```python
import torch

def _softmax(x, axis=-1):
    return torch.softmax(x, dim=axis)

def _gelu(x):
    return torch.nn.functional.gelu(x, approximate='tanh')

def _silu(x):
    return torch.nn.functional.silu(x)

def _sigmoid(x):
    return torch.sigmoid(x)

def _layernorm(x, axis=-1, eps=1e-05):
    m = x.mean(dim=axis, keepdim=True)
    v = x.var(dim=axis, keepdim=True, unbiased=False)
    return (x - m) / torch.sqrt(v + eps)

def _scatter_add(tgt, idx, src, axis=0):
    return tgt.clone().index_add_(axis, idx, src)

def _segment_sum(src, seg, n):
    out = torch.zeros((n,) + src.shape[1:], dtype=src.dtype)
    return out.index_add_(0, seg, src)

def _pad(x, pw):
    flat = tuple((v for pair in reversed(pw) for v in pair))
    return torch.nn.functional.pad(x, flat)
kernel_name = 'adaLN_cond__memory_aug_recurrent_mem_tr__glu_gated_reglu__prompt'

def setup_inputs():

    _w = lambda a: (lambda t: t.to(torch.bfloat16) if t.is_floating_point() else t)(torch.as_tensor(a))

    def _A_setup():
        B, S, Dm = (1, 2048, 576)
        H, Dh = (32, 128)
        M, seg = (8, 32)
        seg = min(seg, S)
        S = S // seg * seg
        return {'x': _w((lambda *s: torch.randn(*s, dtype=torch.bfloat16) * 0.05)(B, S, Dm)), 'mem0': _w((lambda *s: torch.randn(*s, dtype=torch.bfloat16) * 0.8)(B, M, Dm)), 'Wq': _w((lambda *s: torch.randn(*s, dtype=torch.bfloat16) * 0.8)(Dm, H, Dh) * Dm ** (-0.5)), 'Wk': _w((lambda *s: torch.randn(*s, dtype=torch.bfloat16) * 0.8)(Dm, H, Dh) * Dm ** (-0.5)), 'Wv': _w((lambda *s: torch.randn(*s, dtype=torch.bfloat16) * 0.8)(Dm, H, Dh) * Dm ** (-0.5)), 'Wo': _w((lambda *s: torch.randn(*s, dtype=torch.bfloat16) * 0.8)(H, Dh, Dm) * (H * Dh) ** (-0.5)), 'seg_len': seg}
    _A_in = _A_setup()

    def _B_setup():
        B, S, D, F = (1, 2048, 576, 4608)
        return {'x': _w((lambda *s: torch.randn(*s, dtype=torch.bfloat16) * 0.05)(B, S, D)), 'W_gate': _w((lambda *s: torch.randn(*s, dtype=torch.bfloat16) * 0.4)(D, F) * (2.0 / D) ** 0.5), 'W_up': _w((lambda *s: torch.randn(*s, dtype=torch.bfloat16) * 0.4)(D, F) * (2.0 / D) ** 0.5), 'W_down': _w((lambda *s: torch.randn(*s, dtype=torch.bfloat16) * 0.4)(F, D) * (1.0 / F) ** 0.5)}
    _B_in = _B_setup()
    return {'A_x': _A_in['x'], 'A_mem0': _A_in['mem0'], 'A_Wq': _A_in['Wq'], 'A_Wk': _A_in['Wk'], 'A_Wv': _A_in['Wv'], 'A_Wo': _A_in['Wo'], 'A_seg_len': _A_in['seg_len'], 'B_x': _B_in['x'], 'B_W_gate': _B_in['W_gate'], 'B_W_up': _B_in['W_up'], 'B_W_down': _B_in['W_down'], 'c': _w((lambda *s: torch.randn(*s, dtype=torch.bfloat16) * 0.1)(1, 576) * 8.0), 'w_mod': _w((lambda *s: torch.randn(*s, dtype=torch.bfloat16) * 0.1)(576, 6 * 576) * 576 ** (-0.5) * 8.0)}

def reference(A_x, A_mem0, A_Wq, A_Wk, A_Wv, A_Wo, A_seg_len, B_x, B_W_gate, B_W_up, B_W_down, c, w_mod):

    def _A_ref(x, mem0, Wq, Wk, Wv, Wo, seg_len):
        B, S, Dm = x.shape
        H, Dh = (Wq.shape[1], Wq.shape[2])
        M = mem0.shape[1]
        scale = Dh ** (-0.5)
        n_seg = S // seg_len
        L = M + seg_len
        idx = torch.arange(L)
        mask = (idx[:, None] < M) | (idx[:, None] >= idx[None, :])
        mem = mem0
        outs = []
        for s in range(n_seg):
            xs = x[:, s * seg_len:(s + 1) * seg_len, :].clone()
            h = torch.concatenate([mem, xs], axis=1)
            q = torch.einsum('btd,dhe->bhte', h, Wq)
            k = torch.einsum('btd,dhe->bhte', h, Wk)
            v = torch.einsum('btd,dhe->bhte', h, Wv)
            scores = torch.einsum('bhqe,bhke->bhqk', q, k) * scale
            scores = torch.where(mask[None, None], scores, -1000000000.0)
            p = _softmax(scores, axis=-1)
            o = torch.einsum('bhqk,bhke->bhqe', p, v)
            o = torch.einsum('bhte,hed->btd', o, Wo)
            mem = o[:, :M, :].clone()
            outs.append(o[:, M:, :])
        return torch.concatenate(outs, axis=1)

    def _B_ref(x, W_gate, W_up, W_down):
        gate = torch.einsum('bsd,df->bsf', x, W_gate)
        up = torch.einsum('bsd,df->bsf', x, W_up)
        gate = gate * (lambda x, dt: x.to(dt))(gate > 0, gate.dtype)
        h = gate * up
        return torch.einsum('bsf,fd->bsd', h, W_down)
    x = A_x
    mod = (_silu(c) @ w_mod).reshape(c.shape[0], 6, 1, -1)
    sa, ca, ga, sb, cb, gb = (mod[:, 0].clone(), mod[:, 1].clone(), mod[:, 2].clone(), mod[:, 3].clone(), mod[:, 4].clone(), mod[:, 5].clone())
    h = _layernorm(x, axis=-1) * (1 + ca) + sa
    x = x + ga * _A_ref(h, A_mem0, A_Wq, A_Wk, A_Wv, A_Wo, A_seg_len)
    h = _layernorm(x, axis=-1) * (1 + cb) + sb
    x = x + gb * _B_ref(h, B_W_gate, B_W_up, B_W_down)
    return x
```

```python
class Asm:
    def __init__(self):
        self.lines = []
        self._uid = 0
    def __call__(self, s):
        for l in s.strip('\n').split('\n'):
            self.lines.append('    ' + l.strip())
    def label(self, l):
        self.lines.append(l + ':')
    def uid(self, p='L'):
        self._uid += 1
        return f'{p}_{self._uid}'
    def text(self):
        return '\n'.join(self.lines) + '\n'

def kernel_header(a, name):
    a.lines.append(f'.globl {name}')
    a.lines.append('.p2align 8')
    a.lines.append(f'.type {name},@function')
    a.label(name)

def kernel_desc(name, vgpr, sgpr=102, accum=None, wg_y=False):
    if accum is None:
        accum = (vgpr + 3) // 4 * 4
    accum = min(accum, 256)
    s = f'''.amdhsa_kernel {name}
  .amdhsa_next_free_vgpr {vgpr}
  .amdhsa_next_free_sgpr {sgpr}
  .amdhsa_accum_offset {accum}
  .amdhsa_group_segment_fixed_size 0
  .amdhsa_kernarg_size 128
  .amdhsa_user_sgpr_count 2
  .amdhsa_user_sgpr_kernarg_segment_ptr 1
  .amdhsa_system_sgpr_workgroup_id_x 1
'''
    if wg_y:
        s += '  .amdhsa_system_sgpr_workgroup_id_y 1\n'
    s += '.end_amdhsa_kernel\n'
    return s

def load_ptr(a, sreg, slot):
    a(f's_load_dwordx2 s[{sreg}:{sreg+1}], s[0:1], {slot*8}')

def make_srd(a, sd, sb, nbytes):
    a(f's_mov_b32 s{sd}, s{sb}')
    a(f's_and_b32 s{sd+1}, s{sb+1}, 0xffff')
    a(f's_mov_b32 s{sd+2}, {nbytes}')
    a(f's_mov_b32 s{sd+3}, 0x00020000')

def add64(a, sd, sb, imm):
    a(f's_add_u32 s{sd}, s{sb}, {imm}')
    a(f's_addc_u32 s{sd+1}, s{sb+1}, 0')

def bf16r(a, vd, vs):
    a(f'v_cvt_pk_bf16_f32 v{vd}, v{vs}, v{vs}')
    a(f'v_lshlrev_b32 v{vd}, 16, v{vd}')

def wave_sum(a, v, vt, sdst):
    for off in [0x041F, 0x081F, 0x101F, 0x201F, 0x401F]:
        a(f'ds_swizzle_b32 v{vt}, v{v} offset:{off:#x}')
        a('s_waitcnt lgkmcnt(0)')
        a(f'v_add_f32 v{v}, v{v}, v{vt}')
    a('s_nop 1')
    a(f'v_readlane_b32 s{sdst}, v{v}, 32')
    a('s_nop 3')
    a(f'v_add_f32 v{v}, s{sdst}, v{v}')
    a('s_nop 1')
    a(f'v_readlane_b32 s{sdst}, v{v}, 0')
    a('s_nop 3')
```

```python
from asmlib import *
import layout as L

def gen_attn(a):
    name = 'attn_kernel'
    kernel_header(a, name)
    a('s_cmp_ge_u32 s2, 512')
    a('s_cbranch_scc1 attn_end')
    load_ptr(a, 4, L.WS)
    a('v_lshrrev_b32 v1, 6, v0')
    a('v_and_b32 v2, 63, v0')
    a('s_nop 0')
    a('v_readfirstlane_b32 s16, v1')
    a('s_nop 3')
    a('s_lshl_b32 s17, s2, 2')
    a('s_add_u32 s17, s17, s16')
    a('s_lshr_b32 s18, s17, 5')
    a('s_and_b32 s19, s17, 31')
    a('s_waitcnt lgkmcnt(0)')
    a('s_lshl_b32 s20, s18, 18')
    a('s_lshl_b32 s21, s19, 8')
    a('s_add_u32 s20, s20, s21')
    for sd, off in [(6, L.Q), (8, L.K), (10, L.O)]:
        a(f's_add_u32 s21, s20, {off}')
        a(f's_add_u32 s{sd}, s4, s21'); a(f's_addc_u32 s{sd+1}, s5, 0')
    a('s_lshl_b32 s21, s19, 19')
    a('s_lshl_b32 s22, s18, 6')
    a('s_add_u32 s21, s21, s22')
    a(f's_add_u32 s21, s21, {L.V}')
    a('s_add_u32 s12, s4, s21'); a('s_addc_u32 s13, s5, 0')
    a('s_lshl_b32 s21, s17, 11')
    a(f's_add_u32 s22, s21, {L.KMEM}')
    a('s_add_u32 s14, s4, s22'); a('s_addc_u32 s15, s5, 0')
    a(f's_add_u32 s22, s21, {L.VMEM}')
    a('s_add_u32 s24, s4, s22'); a('s_addc_u32 s25, s5, 0')
    a('v_and_b32 v3, 31, v2')
    a('v_lshrrev_b32 v4, 5, v2')
    a('v_lshlrev_b32 v5, 13, v3')
    a('v_lshl_add_u32 v5, v4, 4, v5')
    a('v_and_b32 v6, 7, v2')
    a('v_lshlrev_b32 v6, 8, v6')
    a('v_lshl_add_u32 v6, v4, 4, v6')
    QF, KF, MFr = 16, 48, 80
    for c in range(8):
        a(f'global_load_dwordx4 v[{QF+4*c}:{QF+4*c+3}], v5, s[6:7] offset:{c*32}')
        a(f'global_load_dwordx4 v[{KF+4*c}:{KF+4*c+3}], v5, s[8:9] offset:{c*32}')
        a(f'global_load_dwordx4 v[{MFr+4*c}:{MFr+4*c+3}], v6, s[14:15] offset:{c*32}')
    VF = 112
    a('v_lshlrev_b32 v7, 12, v3')
    a('v_lshl_add_u32 v7, v4, 3, v7')
    a('v_lshlrev_b32 v8, 4, v3')
    a('v_lshl_add_u32 v8, v4, 3, v8')
    for et in range(4):
        r = VF + 16*et
        a(f'global_load_dwordx2 v[{r}:{r+1}], v8, s[24:25] offset:{et*512}')
        a(f'v_mov_b32 v{r+2}, 0'); a(f'v_mov_b32 v{r+3}, 0')
        for b in range(2):
            a(f'global_load_dwordx2 v[{r+4+4*b}:{r+5+4*b}], v7, s[12:13] offset:{b*32}')
            a(f'global_load_dwordx2 v[{r+6+4*b}:{r+7+4*b}], v7, s[12:13] offset:{b*32+16}')
        if et < 3:
            a(f'v_add_u32 v7, {32*4096}, v7')
    T0, T1 = 176, 192
    for i in range(32):
        a(f'v_mov_b32 v{T0+i}, 0')
    a('s_waitcnt vmcnt(24)')
    for c in range(8):
        a(f'v_mfma_f32_32x32x16_bf16 v[{T0}:{T0+15}], v[{MFr+4*c}:{MFr+4*c+3}], v[{QF+4*c}:{QF+4*c+3}], v[{T0}:{T0+15}]')
        a(f'v_mfma_f32_32x32x16_bf16 v[{T1}:{T1+15}], v[{KF+4*c}:{KF+4*c+3}], v[{QF+4*c}:{QF+4*c+3}], v[{T1}:{T1+15}]')
    a('s_nop 7'); a('s_nop 7')
    a('v_mov_b32 v9, 0xce6e6b28')
    a('v_lshlrev_b32 v10, 2, v4')
    for i in range(4):
        bf16r(a, T0+i, T0+i)
        a(f'v_mul_f32 v{T0+i}, 0x3db504f3, v{T0+i}')
        bf16r(a, T0+i, T0+i)
    for i in range(16):
        bf16r(a, T1+i, T1+i)
        a(f'v_mul_f32 v{T1+i}, 0x3db504f3, v{T1+i}')
        bf16r(a, T1+i, T1+i)
        a(f'v_add_u32 v11, {8*(i//4) + i%4}, v10')
        a('v_cmp_le_u32 vcc, v11, v3')
        a(f'v_cndmask_b32 v{T1+i}, v9, v{T1+i}, vcc')
    a(f'v_max_f32 v12, v{T0}, v{T0+1}')
    for r in [T0+2, T0+3] + list(range(T1, T1+16)):
        a(f'v_max_f32 v12, v12, v{r}')
    a('v_xor_b32 v13, 32, v2')
    a('v_lshlrev_b32 v13, 2, v13')
    a('ds_bpermute_b32 v14, v13, v12')
    a('s_waitcnt lgkmcnt(0)')
    a('v_max_f32 v12, v12, v14')
    a('v_mov_b32 v15, 0')
    for r in [T0, T0+1, T0+2, T0+3] + list(range(T1, T1+16)):
        a(f'v_sub_f32 v{r}, v{r}, v12')
        a(f'v_mul_f32 v{r}, 0x3fb8aa3b, v{r}')
        a(f'v_exp_f32 v{r}, v{r}')
        a('s_nop 0')
        a(f'v_add_f32 v15, v15, v{r}')
    a('ds_bpermute_b32 v14, v13, v15')
    a('s_waitcnt lgkmcnt(0)')
    a('v_add_f32 v15, v15, v14')
    a('v_rcp_f32 v15, v15')
    a('s_nop 0')
    for r in [T0, T0+1, T0+2, T0+3] + list(range(T1, T1+16)):
        a(f'v_mul_f32 v{r}, v{r}, v15')
    a(f'v_cvt_pk_bf16_f32 v16, v{T0}, v{T0+1}'); a(f'v_cvt_pk_bf16_f32 v17, v{T0+2}, v{T0+3}')
    a('v_mov_b32 v18, 0'); a('v_mov_b32 v19, 0')
    for j in range(8):
        a(f'v_cvt_pk_bf16_f32 v{20+j}, v{T1+2*j}, v{T1+2*j+1}')
    a('s_waitcnt vmcnt(0)')
    a('v_lshlrev_b32 v5, 13, v3')
    a('v_lshl_add_u32 v5, v4, 3, v5')
    for et in range(4):
        r = VF + 16*et
        d = 48 + 16*et
        for i in range(16):
            a(f'v_mov_b32 v{d+i}, 0')
        a('s_nop 1')
        for b in range(3):
            a(f'v_mfma_f32_32x32x16_bf16 v[{d}:{d+15}], v[{r+4*b}:{r+4*b+3}], v[{16+4*b}:{19+4*b}], v[{d}:{d+15}]')
    a('s_nop 7'); a('s_nop 7')
    for et in range(4):
        d = 48 + 16*et
        for q in range(4):
            a(f'v_cvt_pk_bf16_f32 v28, v{d+4*q}, v{d+4*q+1}')
            a(f'v_cvt_pk_bf16_f32 v29, v{d+4*q+2}, v{d+4*q+3}')
            a(f'global_store_dwordx2 v5, v[28:29], s[10:11] offset:{et*64 + q*16}')
    a.label('attn_end')
    a('s_endpgm')
    return kernel_desc(name, 208)
```

```python
from asmlib import *
import layout as L

ACC = 64
FR = 32

def gen_gemm(a, name, MT, NT, K, lda, ldb, a_src, b_kind, epi, ldo=None):
    nsteps = K // 64
    TR = [False]
    kernel_header(a, name)
    a(f's_cmp_ge_u32 s2, {MT*NT}')
    a(f's_cbranch_scc1 {name}_end')
    load_ptr(a, 4, L.WS)
    load_ptr(a, 6, a_src[0])
    if b_kind[0] == 'qkv':
        load_ptr(a, 8, L.A_WQ); load_ptr(a, 10, L.A_WK); load_ptr(a, 14, L.A_WV)
    elif b_kind[0] == 'single':
        load_ptr(a, 8, b_kind[1])
    else:
        load_ptr(a, 8, b_kind[1]); load_ptr(a, 10, b_kind[2])
    if epi in ('res1', 'res2'):
        load_ptr(a, 40, L.A_X)
        load_ptr(a, 42, L.OUT)
    assert MT & (MT - 1) == 0
    a(f's_and_b32 s16, s2, {MT-1}')
    a(f's_lshr_b32 s17, s2, {MT.bit_length()-1}')
    a('s_waitcnt lgkmcnt(0)')
    if a_src[1]:
        add64(a, 6, 6, a_src[1])
    a(f's_mul_i32 s18, s16, {128*lda}')
    a('s_add_u32 s6, s6, s18')
    a('s_addc_u32 s7, s7, 0')
    if b_kind[0] == 'qkv':
        a('s_lshr_b32 s18, s17, 5')
        a('s_cmp_eq_u32 s18, 1')
        a('s_cselect_b32 s8, s10, s8')
        a('s_cselect_b32 s9, s11, s9')
        a('s_cmp_eq_u32 s18, 2')
        a('s_cselect_b32 s8, s14, s8')
        a('s_cselect_b32 s9, s15, s9')
        a('s_and_b32 s19, s17, 31')
        a('s_lshl_b32 s19, s19, 8')
        a('s_add_u32 s8, s8, s19')
        a('s_addc_u32 s9, s9, 0')
    elif b_kind[0] == 'single':
        a('s_lshl_b32 s19, s17, 8')
        a('s_add_u32 s8, s8, s19')
        a('s_addc_u32 s9, s9, 0')
    else:
        a('s_lshl_b32 s19, s17, 7')
        a('s_add_u32 s8, s8, s19')
        a('s_addc_u32 s9, s9, 0')
        a('s_add_u32 s10, s10, s19')
        a('s_addc_u32 s11, s11, 0')
    a('v_lshrrev_b32 v1, 6, v0')
    a('v_and_b32 v2, 63, v0')
    a('s_nop 0')
    a('v_readfirstlane_b32 s12, v1')
    a('s_nop 3')
    a('s_lshl_b32 s13, s12, 12')
    a('v_lshrrev_b32 v3, 3, v2')
    a('v_lshrrev_b32 v4, 4, v2')
    a('v_and_b32 v5, 7, v2')
    a('v_lshlrev_b32 v6, 5, v1')
    a(f's_mov_b32 s20, {lda}')
    for j in range(4):
        a(f'v_add_u32 v7, {4*j}, v4')
        a('v_and_b32 v7, 7, v7')
        a('v_xor_b32 v7, v5, v7')
        a(f'v_add_u32 v{8+j}, {8*j}, v3')
        a(f'v_add_u32 v{8+j}, v{8+j}, v6')
        a(f'v_mul_lo_u32 v{8+j}, v{8+j}, s20')
        a(f'v_lshl_add_u32 v{8+j}, v7, 4, v{8+j}')
    a('v_and_b32 v5, 15, v2')
    a('v_lshrrev_b32 v7, 2, v5')
    a('v_xor_b32 v7, v7, v4')
    a('v_and_b32 v5, 3, v5')
    a('v_lshl_add_u32 v7, v7, 2, v5')
    a('v_lshlrev_b32 v6, 4, v1')
    a(f's_mov_b32 s20, {ldb}')
    for j in range(4):
        a(f'v_add_u32 v3, {4*j}, v4')
        a('v_add_u32 v3, v3, v6')
        a('v_mul_lo_u32 v3, v3, s20')
        if b_kind[0] == 'dual':
            a('v_and_b32 v5, 7, v7')
            a('v_lshl_add_u32 v3, v5, 4, v3')
            a('v_cmp_gt_u32 vcc, 8, v7')
            a('v_mov_b32 v20, s10')
            a('v_mov_b32 v21, s11')
            a('v_mov_b32 v22, s8')
            a('v_mov_b32 v23, s9')
            a('v_cndmask_b32 v20, v20, v22, vcc')
            a('v_cndmask_b32 v21, v21, v23, vcc')
            a(f'v_add_co_u32 v{12+2*j}, vcc, v20, v3')
            a(f'v_addc_co_u32 v{13+2*j}, vcc, 0, v21, vcc')
        else:
            if b_kind[0] == 'single' and (ldb // 2) % 128:
                a('s_lshl_b32 s19, s17, 4')
                a('v_add_u32 v5, s19, v7')
                a(f'v_cmp_le_u32 vcc, {ldb//16}, v5')
                a('v_subrev_u32 v5, 8, v7')
                a('v_cndmask_b32 v5, v7, v5, vcc')
                a('v_lshl_add_u32 v3, v5, 4, v3')
            else:
                a('v_lshl_add_u32 v3, v7, 4, v3')
            a('v_mov_b32 v21, s9')
            a(f'v_add_co_u32 v{12+2*j}, vcc, s8, v3')
            a(f'v_addc_co_u32 v{13+2*j}, vcc, 0, v21, vcc')
    a('v_and_b32 v3, 31, v2')
    a('v_lshrrev_b32 v4, 5, v2')
    a('v_and_b32 v5, 1, v1')
    a('v_lshl_add_u32 v6, v5, 6, v3')
    a('v_lshrrev_b32 v7, 1, v3')
    a('v_and_b32 v7, 7, v7')
    for kk in range(4):
        a(f'v_add_u32 v26, {2*kk}, v4')
        a('v_xor_b32 v26, v26, v7')
        a('v_lshlrev_b32 v26, 4, v26')
        a(f'v_lshl_add_u32 v{20+kk}, v6, 7, v26')
    a('v_lshrrev_b32 v5, 1, v1')
    a('v_and_b32 v6, 15, v2')
    a('v_lshrrev_b32 v7, 2, v6')
    a('v_lshl_add_u32 v26, v4, 3, v7')
    a('v_lshrrev_b32 v27, 4, v2')
    a('v_and_b32 v27, 1, v27')
    a('v_and_b32 v28, 3, v2')
    a('v_lshlrev_b32 v28, 3, v28')
    a('v_lshl_add_u32 v28, v27, 5, v28')
    for nt in range(2):
        a(f'v_lshl_add_u32 v29, v5, 1, {nt}')
        a('v_xor_b32 v29, v29, v7')
        a('v_lshl_add_u32 v29, v29, 6, v28')
        a(f'v_lshl_add_u32 v{24+nt}, v26, 8, v29')
        a(f'v_add_u32 v{24+nt}, 16384, v{24+nt}')
    for i in range(64):
        a(f'v_mov_b32 v{ACC+i}, 0')

    def issue_dma(stage):
        base = stage * 32768
        for j in range(4):
            a(f's_add_u32 m0, s13, {base + j*1024}')
            a('s_nop 0')
            a(f'global_load_lds_dwordx4 v{8+j}, s[6:7]')
        for j in range(4):
            a(f's_add_u32 m0, s13, {base + 16384 + j*1024}')
            a('s_nop 0')
            a(f'global_load_lds_dwordx4 v[{12+2*j}:{13+2*j}], off')
        a('s_add_u32 s6, s6, 128')
        a('s_addc_u32 s7, s7, 0')
        for j in range(4):
            a(f'v_add_co_u32 v{12+2*j}, vcc, {64*ldb}, v{12+2*j}')
            a(f'v_addc_co_u32 v{13+2*j}, vcc, 0, v{13+2*j}, vcc')

    def reads(stage, kk, s):
        base = stage * 32768
        f = FR + s * 16
        for mt in range(2):
            a(f'ds_read_b128 v[{f+4*mt}:{f+4*mt+3}], v{20+kk} offset:{base + mt*4096}')
        for nt in range(2):
            for j in range(2):
                a(f'ds_read_b64_tr_b16 v[{f+8+4*nt+2*j}:{f+8+4*nt+2*j+1}], v{24+nt} offset:{base + (16*kk+4*j)*256}')

    def mfmas(s):
        f = FR + s * 16
        for mt in range(2):
            for nt in range(2):
                c = ACC + (mt*2+nt)*16
                w = f'v[{f+8+4*nt}:{f+8+4*nt+3}]'
                x = f'v[{f+4*mt}:{f+4*mt+3}]'
                if TR[0]:
                    a(f'v_mfma_f32_32x32x16_bf16 v[{c}:{c+15}], {x}, {w}, v[{c}:{c+15}]')
                else:
                    a(f'v_mfma_f32_32x32x16_bf16 v[{c}:{c+15}], {w}, {x}, v[{c}:{c+15}]')

    def compute(stage):
        reads(stage, 0, 0)
        for kk in range(4):
            if kk < 3:
                reads(stage, kk+1, (kk+1) & 1)
                a('s_waitcnt lgkmcnt(6)')
            else:
                a('s_waitcnt lgkmcnt(0)')
            mfmas(kk & 1)

    def step(stage, has_next):
        if has_next:
            issue_dma(stage ^ 1)
            a('s_waitcnt vmcnt(8)')
        else:
            a('s_waitcnt vmcnt(0)')
        a('s_barrier')
        compute(stage)
        a('s_barrier')

    issue_dma(0)
    if b_kind[0] == 'qkv':
        a('s_cmp_ge_u32 s17, 64')
        a(f's_cbranch_scc1 {name}_vpath')
        for k in range(nsteps):
            step(k & 1, k + 1 < nsteps)
        a(f's_branch {name}_epi')
        a.label(f'{name}_vpath')
        TR[0] = True
        for k in range(nsteps):
            step(k & 1, k + 1 < nsteps)
        TR[0] = False
        a('s_nop 15')
        a('v_and_b32 v3, 31, v2')
        a('v_lshrrev_b32 v4, 5, v2')
        a('v_and_b32 v5, 1, v1')
        a('v_lshrrev_b32 v6, 1, v1')
        a('v_lshl_add_u32 v7, v6, 6, v3')
        a('s_sub_u32 s18, s17, 64')
        a('s_lshl_b32 s18, s18, 7')
        a('v_add_u32 v7, s18, v7')
        a('v_lshlrev_b32 v8, 12, v7')
        a('v_lshl_add_u32 v8, v5, 7, v8')
        a('v_lshl_add_u32 v8, v4, 3, v8')
        a('s_lshl_b32 s18, s16, 8')
        a(f's_add_u32 s18, s18, {L.V}')
        a('s_add_u32 s22, s4, s18')
        a('s_addc_u32 s23, s5, 0')
        for mt in range(2):
            for nt in range(2):
                c = ACC + (mt*2+nt)*16
                for q in range(4):
                    a(f'v_cvt_pk_bf16_f32 v10, v{c+4*q}, v{c+4*q+1}')
                    a(f'v_cvt_pk_bf16_f32 v11, v{c+4*q+2}, v{c+4*q+3}')
                    off = mt*64 + q*16
                    if nt == 0:
                        a(f'global_store_dwordx2 v8, v[10:11], s[22:23] offset:{off}')
                    else:
                        a(f'v_add_u32 v12, {32*4096}, v8')
                        a(f'global_store_dwordx2 v12, v[10:11], s[22:23] offset:{off}')
        a(f's_branch {name}_end')
        a.label(f'{name}_epi')
    elif nsteps <= 12:
        for k in range(nsteps):
            step(k & 1, k + 1 < nsteps)
    else:
        assert nsteps % 2 == 0
        a(f's_mov_b32 s21, {nsteps//2 - 1}')
        a.label(f'{name}_loop')
        step(0, True)
        step(1, True)
        a('s_sub_u32 s21, s21, 1')
        a('s_cmp_lg_u32 s21, 0')
        a(f's_cbranch_scc1 {name}_loop')
        step(0, True)
        step(1, False)
    a('s_nop 15')
    a('v_and_b32 v3, 31, v2')
    a('v_lshrrev_b32 v4, 5, v2')
    a('v_and_b32 v5, 1, v1')
    a('v_lshrrev_b32 v6, 1, v1')
    a('v_lshl_add_u32 v7, v5, 6, v3')
    a('s_lshl_b32 s18, s16, 7')
    a('v_add_u32 v7, s18, v7')
    if epi == 'store':
        if b_kind[0] == 'qkv':
            a('s_lshr_b32 s18, s17, 5')
            a(f's_mul_i32 s18, s18, {L.K - L.Q}')
            a(f's_add_u32 s18, s18, {L.Q}')
            a('s_and_b32 s19, s17, 31')
            a('s_lshl_b32 s19, s19, 8')
            a('s_add_u32 s18, s18, s19')
        a('s_add_u32 s22, s4, s18')
        a('s_addc_u32 s23, s5, 0')
        a(f's_mov_b32 s20, {ldo}')
        a('v_mul_lo_u32 v8, v7, s20')
        a('v_lshl_add_u32 v9, v6, 7, v8')
        a('v_lshl_add_u32 v9, v4, 3, v9')
        for mt in range(2):
            for nt in range(2):
                c = ACC + (mt*2+nt)*16
                for q in range(4):
                    a(f'v_cvt_pk_bf16_f32 v10, v{c+4*q}, v{c+4*q+1}')
                    a(f'v_cvt_pk_bf16_f32 v11, v{c+4*q+2}, v{c+4*q+3}')
                    off = nt*64 + q*16
                    if mt == 0:
                        a(f'global_store_dwordx2 v9, v[10:11], s[22:23] offset:{off}')
                    else:
                        a(f'v_add_u32 v12, {32*ldo}, v9')
                        a(f'global_store_dwordx2 v12, v[10:11], s[22:23] offset:{off}')
    elif epi == 'glu':
        a('v_lshlrev_b32 v8, 2, v2')
        a('v_lshl_add_u32 v8, v5, 14, v8')
        a('v_cmp_eq_u32 vcc, 1, v6')
        a('s_and_saveexec_b64 s[24:25], vcc')
        a(f's_cbranch_execz {name}_g1')
        for i in range(64):
            a(f'ds_write_b32 v8, v{ACC+i} offset:{i*256}')
        a.label(f'{name}_g1')
        a('s_mov_b64 exec, s[24:25]')
        a('s_waitcnt lgkmcnt(0)')
        a('s_barrier')
        a('v_cmp_eq_u32 vcc, 0, v6')
        a('s_and_saveexec_b64 s[24:25], vcc')
        a(f's_cbranch_execz {name}_end')
        a(f's_add_u32 s22, s4, {L.HID}')
        a('s_addc_u32 s23, s5, 0')
        a('s_lshl_b32 s19, s17, 7')
        a('s_add_u32 s22, s22, s19')
        a('s_addc_u32 s23, s23, 0')
        a(f's_mov_b32 s20, {L.F*2}')
        a('v_mul_lo_u32 v9, v7, s20')
        a('v_lshl_add_u32 v9, v4, 3, v9')
        for mt in range(2):
            for nt in range(2):
                c = ACC + (mt*2+nt)*16
                for q in range(4):
                    for r in range(4):
                        a(f'ds_read_b32 v{12+r}, v8 offset:{((mt*2+nt)*16+4*q+r)*256}')
                    a('s_waitcnt lgkmcnt(0)')
                    for r in range(4):
                        bf16r(a, 16, c+4*q+r)
                        bf16r(a, 17, 12+r)
                        a('v_max_f32 v16, 0, v16')
                        a(f'v_mul_f32 v{12+r}, v16, v17')
                    a('v_cvt_pk_bf16_f32 v10, v12, v13')
                    a('v_cvt_pk_bf16_f32 v11, v14, v15')
                    off = nt*64 + q*16
                    if mt == 0:
                        a(f'global_store_dwordx2 v9, v[10:11], s[22:23] offset:{off}')
                    else:
                        a(f'v_add_u32 v18, {32*L.F*2}, v9')
                        a(f'global_store_dwordx2 v18, v[10:11], s[22:23] offset:{off}')
    elif epi in ('res1', 'res2'):
        gidx = 2 if epi == 'res1' else 5
        if epi == 'res1':
            a('s_mov_b32 s22, s40'); a('s_mov_b32 s23, s41')
            add64(a, 26, 4, L.X1)
        else:
            add64(a, 22, 4, L.X1)
            a('s_mov_b32 s26, s42'); a('s_mov_b32 s27, s43')
        a('s_lshl_b32 s19, s17, 8')
        a('s_add_u32 s22, s22, s19'); a('s_addc_u32 s23, s23, 0')
        a('s_add_u32 s26, s26, s19'); a('s_addc_u32 s27, s27, 0')
        a(f's_lshl_b32 s19, s17, 9')
        a(f's_add_u32 s19, s19, {L.MOD + gidx*2304}')
        a('s_add_u32 s28, s4, s19'); a('s_addc_u32 s29, s5, 0')
        a(f's_mov_b32 s20, {L.D*2}')
        a('v_mul_lo_u32 v9, v7, s20')
        a('v_lshl_add_u32 v9, v6, 7, v9')
        a('v_lshl_add_u32 v9, v4, 3, v9')
        a('v_lshlrev_b32 v19, 8, v6')
        a('v_lshl_add_u32 v19, v4, 4, v19')
        a('s_lshl_b32 s19, s17, 7')
        a('v_lshl_add_u32 v20, v6, 6, s19')
        a(f'v_cmp_gt_u32 vcc, {L.D}, v20')
        a('s_and_saveexec_b64 s[24:25], vcc')
        a(f's_cbranch_execz {name}_end')
        for mt in range(2):
            if mt == 1:
                a(f'v_add_u32 v9, {32*L.D*2}, v9')
            for nt in range(2):
                c = ACC + (mt*2+nt)*16
                for q in range(4):
                    off = nt*64 + q*16
                    a(f'global_load_dwordx2 v[10:11], v9, s[22:23] offset:{off}')
                    a(f'global_load_dwordx4 v[12:15], v19, s[28:29] offset:{2*off}')
                    a('s_waitcnt vmcnt(0)')
                    for r in range(4):
                        bf16r(a, 16, c+4*q+r)
                        a(f'v_mul_f32 v16, v16, v{12+r}')
                        bf16r(a, 16, 16)
                        src = 10 + r//2
                        if r % 2 == 0:
                            a(f'v_lshlrev_b32 v17, 16, v{src}')
                        else:
                            a(f'v_and_b32 v17, 0xffff0000, v{src}')
                        a(f'v_add_f32 v{12+r}, v16, v17')
                    a('v_cvt_pk_bf16_f32 v10, v12, v13')
                    a('v_cvt_pk_bf16_f32 v11, v14, v15')
                    a(f'global_store_dwordx2 v9, v[10:11], s[26:27] offset:{off}')
    a.label(f'{name}_end')
    a('s_endpgm')
    return kernel_desc(name, 128)
```

```python
from asmlib import *
import layout as L

def gen_k0(a):
    name = 'k0_kernel'
    kernel_header(a, name)
    a('s_cmp_ge_u32 s2, 90')
    a('s_cbranch_scc1 k0_end')
    load_ptr(a, 4, L.WS)
    load_ptr(a, 6, L.C_)
    load_ptr(a, 8, L.WMOD)
    a('s_waitcnt lgkmcnt(0)')
    a('s_cmp_ge_u32 s2, 54')
    a('s_cbranch_scc1 k0_zero')
    make_srd(a, 12, 6, 1152)
    make_srd(a, 16, 8, 576 * 3456 * 2)
    a('v_lshlrev_b32 v1, 1, v0')
    for j in range(3):
        a(f'buffer_load_ushort v{2+j}, v1, s[12:15], 0 offen offset:{512*j}')
    a('s_waitcnt vmcnt(0)')
    a('v_lshlrev_b32 v8, 2, v0')
    for j in range(3):
        a(f'v_lshlrev_b32 v{2+j}, 16, v{2+j}')
        a(f'v_mul_f32 v5, 0xbfb8aa3b, v{2+j}')
        a('v_exp_f32 v5, v5')
        a('s_nop 0')
        a('v_add_f32 v5, 1.0, v5')
        a('v_rcp_f32 v5, v5')
        a('s_nop 0')
        a(f'v_mul_f32 v5, v5, v{2+j}')
        bf16r(a, 5, 5)
        a(f'ds_write_b32 v8, v5 offset:{1024*j}')
    a('s_waitcnt lgkmcnt(0)')
    a('s_barrier')
    a('v_lshrrev_b32 v1, 6, v0')
    a('v_and_b32 v2, 63, v0')
    a('s_lshl_b32 s3, s2, 6')
    a('v_add_u32 v2, s3, v2')
    a('v_lshlrev_b32 v3, 1, v2')
    a('s_mov_b32 s20, 995328')
    a('v_mul_lo_u32 v4, v1, s20')
    a('v_add_u32 v3, v3, v4')
    a('s_mov_b32 s20, 576')
    a('v_mul_lo_u32 v9, v1, s20')
    a('v_mov_b32 v30, 0')
    a('s_mov_b32 s20, 0')
    for i in range(18):
        for r in range(8):
            a(f'buffer_load_ushort v{10+r}, v3, s[16:19], s20 offen')
            a('s_add_u32 s20, s20, 6912')
        a(f'ds_read_b128 v[20:23], v9 offset:{i*32}')
        a(f'ds_read_b128 v[24:27], v9 offset:{i*32+16}')
        a('s_waitcnt vmcnt(0) lgkmcnt(0)')
        for r in range(8):
            a(f'v_lshlrev_b32 v{10+r}, 16, v{10+r}')
            a(f'v_fmac_f32 v30, v{10+r}, v{20+r}')
    a('v_lshlrev_b32 v8, 2, v0')
    a('ds_write_b32 v8, v30 offset:4096')
    a('s_waitcnt lgkmcnt(0)')
    a('s_barrier')
    a('v_cmp_gt_u32 vcc, 64, v0')
    a('s_and_saveexec_b64 s[22:23], vcc')
    a('s_cbranch_execz k0_end')
    for w in range(4):
        a(f'ds_read_b32 v{10+w}, v8 offset:{4096+256*w}')
    a('s_waitcnt lgkmcnt(0)')
    a('v_add_f32 v10, v10, v11')
    a('v_add_f32 v12, v12, v13')
    a('v_add_f32 v10, v10, v12')
    bf16r(a, 10, 10)
    a('v_lshlrev_b32 v3, 2, v2')
    a(f'global_store_dword v3, v10, s[4:5] offset:{L.MOD}')
    a('s_branch k0_end')
    a.label('k0_zero')
    a('s_sub_u32 s3, s2, 54')
    a('s_lshl_b32 s3, s3, 16')
    a('s_add_u32 s3, s3, %d' % L.ACC)
    a('s_add_u32 s4, s4, s3')
    a('s_addc_u32 s5, s5, 0')
    a('v_lshlrev_b32 v1, 4, v0')
    for r in range(4):
        a(f'v_mov_b32 v{4+r}, 0')
    for i in range(16):
        a('global_store_dwordx4 v1, v[4:7], s[4:5]')
        a('s_add_u32 s4, s4, 4096')
        a('s_addc_u32 s5, s5, 0')
    a.label('k0_end')
    a('s_endpgm')
    return kernel_desc(name, 32)

def gen_ln(a, name, src_slot, src_off, shift_idx, scale_idx, dst_off):
    kernel_header(a, name)
    a('s_cmp_ge_u32 s2, 512')
    a(f's_cbranch_scc1 {name}_end')
    load_ptr(a, 4, L.WS)
    load_ptr(a, 6, src_slot)
    a('s_waitcnt lgkmcnt(0)')
    if src_off:
        add64(a, 6, 6, src_off)
    add64(a, 24, 4, dst_off)
    add64(a, 26, 4, L.MOD + shift_idx * 2304)
    add64(a, 28, 4, L.MOD + scale_idx * 2304)
    a('v_lshrrev_b32 v1, 6, v0')
    a('s_lshl_b32 s3, s2, 2')
    a('v_add_u32 v1, s3, v1')
    a('v_and_b32 v2, 63, v0')
    a('s_mov_b32 s20, 1152')
    a('v_mul_lo_u32 v3, v1, s20')
    a('v_lshl_add_u32 v3, v2, 1, v3')
    a('v_lshlrev_b32 v4, 2, v2')
    for j in range(9):
        a(f'global_load_ushort v{10+j}, v3, s[6:7] offset:{128*j}')
    for j in range(9):
        a(f'global_load_dword v{20+j}, v4, s[26:27] offset:{256*j}')
        a(f'global_load_dword v{30+j}, v4, s[28:29] offset:{256*j}')
    a('s_waitcnt vmcnt(18)')
    a('v_mov_b32 v5, 0')
    for j in range(9):
        a(f'v_lshlrev_b32 v{10+j}, 16, v{10+j}')
        a(f'v_add_f32 v5, v5, v{10+j}')
    wave_sum(a, 5, 6, 21)
    a('v_mov_b32 v7, 0x3ae38e39')
    a('v_mul_f32 v5, s21, v7')
    a('v_mov_b32 v8, 0')
    for j in range(9):
        a(f'v_sub_f32 v6, v{10+j}, v5')
        a('v_fmac_f32 v8, v6, v6')
    wave_sum(a, 8, 6, 22)
    a('v_mul_f32 v8, s22, v7')
    bf16r(a, 5, 5)
    bf16r(a, 8, 8)
    a('v_add_f32 v8, 0x3727c5ac, v8')
    bf16r(a, 8, 8)
    a('v_sqrt_f32 v8, v8')
    a('s_nop 0')
    bf16r(a, 8, 8)
    a('v_rcp_f32 v8, v8')
    a('s_waitcnt vmcnt(0)')
    for j in range(9):
        a(f'v_sub_f32 v6, v{10+j}, v5')
        bf16r(a, 6, 6)
        a('v_mul_f32 v6, v6, v8')
        bf16r(a, 6, 6)
        a(f'v_add_f32 v9, 1.0, v{30+j}')
        bf16r(a, 9, 9)
        a('v_mul_f32 v6, v6, v9')
        bf16r(a, 6, 6)
        a(f'v_add_f32 v6, v6, v{20+j}')
        a('v_cvt_pk_bf16_f32 v6, v6, v6')
        a(f'global_store_short v3, v6, s[24:25] offset:{128*j}')
    a.label(f'{name}_end')
    a('s_endpgm')
    return kernel_desc(name, 48)
```

```python
from asmlib import *
import layout as L

LDS_MEM = 0
LDS_W = 16384
LDS_Q = LDS_MEM + 9216
LDS_K = LDS_Q + 2048
LDS_VT = LDS_K + 2048

def wreg(X, t, c):
    idx = ((X * 2 + t) * 18 + c) * 4
    if idx < 256:
        return f'a[{idx}:{idx+3}]', f'a{idx}', idx, 'a'
    idx = idx - 256 + 80
    return f'v[{idx}:{idx+3}]', f'v{idx}', idx, 'v'

ACCQ = 8
MF = 32
KX = 40
VX = 72

def gen_rec(a):
    name = 'rec_kernel'
    kernel_header(a, name)
    a('s_cmp_ge_u32 s2, 32')
    a('s_cbranch_scc1 rec_end')
    load_ptr(a, 4, L.WS)
    load_ptr(a, 6, L.A_WQ); load_ptr(a, 8, L.A_WK); load_ptr(a, 10, L.A_WV)
    load_ptr(a, 12, L.A_WO); load_ptr(a, 14, L.A_MEM0)
    a('v_lshrrev_b32 v1, 6, v0')
    a('v_and_b32 v2, 63, v0')
    a('s_nop 0')
    a('v_readfirstlane_b32 s16, v1')
    a('s_waitcnt lgkmcnt(0)')
    a('s_lshl_b32 s17, s16, 10')
    a('s_mov_b32 s30, 0'); a('s_mov_b32 s31, 0x41400000')
    a('s_mov_b32 s32, 0'); a('s_mov_b32 s33, 0x40f00000')
    a('s_mov_b32 s34, 0'); a('s_mov_b32 s35, 0x40e00000')
    a('s_mov_b32 s36, 0'); a('s_mov_b32 s37, 0xc1400000')
    a('v_lshrrev_b32 v3, 4, v2')
    a('v_and_b32 v4, 15, v2')
    a('v_lshlrev_b32 v5, 13, v3')
    a('v_lshl_add_u32 v5, v4, 4, v5')
    a('v_lshl_add_u32 v5, v1, 15, v5')
    a('v_lshrrev_b32 v6, 2, v4')
    a('v_lshl_add_u32 v6, v3, 3, v6')
    a('v_lshlrev_b32 v6, 8, v6')
    a('v_and_b32 v7, 3, v2')
    a('v_lshl_add_u32 v6, v7, 3, v6')
    a('v_lshl_add_u32 v6, v1, 6, v6')
    for i in range(3):
        a(f'v_add_u32 v{36+i}, {LDS_W + i*49152}, v6')
    for X, sp in enumerate([6, 8, 10]):
        a(f's_lshl_b32 s18, s2, 8')
        a(f's_add_u32 s{sp}, s{sp}, s18')
        a(f's_addc_u32 s{sp+1}, s{sp+1}, 0')
        for n in range(36):
            a(f's_add_u32 m0, s17, {LDS_W + n*4096}')
            a('s_nop 0')
            a(f'global_load_lds_dwordx4 v5, s[{sp}:{sp+1}]')
            a(f's_add_u32 s{sp}, s{sp}, {16*8192}')
            a(f's_addc_u32 s{sp+1}, s{sp+1}, 0')
        a('s_waitcnt vmcnt(0)')
        a('s_barrier')
        for t in range(2):
            for c in range(18):
                _, _, idx, kind = wreg(X, t, c)
                for j in range(2):
                    off = (32*c+4*j)*256 + t*32
                    a(f'ds_read_b64_tr_b16 {kind}[{idx+2*j}:{idx+2*j+1}], v{36 + off//49152} offset:{off % 49152}')
        a('s_waitcnt lgkmcnt(0)')
        a('s_barrier')
    a(f's_mul_i32 s18, s2, {128*1152}')
    a('s_add_u32 s12, s12, s18')
    a('s_addc_u32 s13, s13, 0')
    a('v_lshlrev_b32 v5, 4, v2')
    a('v_lshl_add_u32 v5, v1, 10, v5')
    for n in range(36):
        a(f's_add_u32 m0, s17, {LDS_W + n*4096}')
        a('s_nop 0')
        a('global_load_lds_dwordx4 v5, s[12:13]')
        a('s_add_u32 s12, s12, 4096')
        a('s_addc_u32 s13, s13, 0')
    add64(a, 40, 4, L.ACC)
    a('s_lshl_b32 s18, s2, 8')
    a(f's_add_u32 s18, s18, {L.K}')
    a('s_add_u32 s42, s4, s18'); a('s_addc_u32 s43, s5, 0')
    a(f's_mul_i32 s18, s2, {128*4096}')
    a(f's_add_u32 s18, s18, {L.V}')
    a('s_add_u32 s44, s4, s18'); a('s_addc_u32 s45, s5, 0')
    a('s_lshl_b32 s18, s2, 11')
    a(f's_add_u32 s18, s18, {L.KMEM}')
    a('s_add_u32 s46, s4, s18'); a('s_addc_u32 s47, s5, 0')
    a('s_lshl_b32 s18, s2, 11')
    a(f's_add_u32 s18, s18, {L.VMEM}')
    a('s_add_u32 s48, s4, s18'); a('s_addc_u32 s49, s5, 0')
    a('s_mov_b32 s20, 0')
    a('v_lshlrev_b32 v3, 4, v0')
    for r in range(3):
        if r == 2:
            a('v_cmp_gt_u32 vcc, 64, v0')
            a('s_and_saveexec_b64 s[24:25], vcc')
        a(f'global_load_dwordx4 v[8:11], v3, s[14:15] offset:{r*4096}' if r < 1 else f'v_add_u32 v4, {r*4096}, v3')
        if r >= 1:
            a(f'global_load_dwordx4 v[8:11], v4, s[14:15]')
        a('s_waitcnt vmcnt(0)')
        a(f'ds_write_b128 v3, v[8:11] offset:{LDS_MEM + r*4096}')
    a('s_mov_b64 exec, s[24:25]')
    a('s_waitcnt vmcnt(0) lgkmcnt(0)')
    a('s_barrier')
    a('s_branch rec_compute')

    a.label('rec_loop')
    a('v_lshlrev_b32 v3, 4, v0')
    a('s_mov_b32 s21, 0')
    a.label('rec_poll')
    for r in range(9):
        a(f'global_load_dwordx4 v[{8+4*r}:{11+4*r}], v3, s[40:41] offset:{r*4096} sc0 sc1' if r < 1 else
          f'v_add_u32 v4, {r*4096}, v3')
        if r >= 1:
            a(f'global_load_dwordx4 v[{8+4*r}:{11+4*r}], v4, s[40:41] sc0 sc1')
    a('s_waitcnt vmcnt(0)')
    a('s_mov_b64 s[26:27], -1')
    for r in range(9):
        for hlf in range(2):
            b = 8 + 4*r + 2*hlf
            a(f'v_add_f64 v[{b}:{b+1}], v[{b}:{b+1}], s[36:37]')
            a(f'v_cmp_lt_f64 vcc, |v[{b}:{b+1}]|, s[34:35]')
            a('s_and_b64 s[26:27], s[26:27], vcc')
    a('s_cmp_eq_u64 s[26:27], exec')
    a('s_cbranch_scc1 rec_got')
    a('s_add_u32 s21, s21, 1')
    a('s_cmp_lt_u32 s21, 5000')
    a('s_cbranch_scc0 rec_got')
    a('s_sleep 1')
    a('s_branch rec_poll')
    a.label('rec_got')
    a('v_and_b32 v4, 3, v0')
    a('s_mov_b32 s18, 2304')
    a('v_mul_lo_u32 v4, v4, s18')
    a('v_bfe_u32 v5, v0, 2, 2')
    a('v_lshl_add_u32 v4, v5, 3, v4')
    a('v_lshrrev_b32 v5, 4, v0')
    a('v_lshrrev_b32 v6, 2, v5')
    a('v_and_b32 v5, 3, v5')
    a('v_lshl_add_u32 v4, v6, 5, v4')
    a('v_lshl_add_u32 v4, v5, 1, v4')
    for r in range(9):
        for hlf in range(2):
            b = 8 + 4*r + 2*hlf
            a(f'v_cvt_f32_f64 v{b}, v[{b}:{b+1}]')
            a(f'v_cvt_pk_bf16_f32 v{b}, v{b}, v{b}')
            a(f'ds_write_b16 v4, v{b} offset:{LDS_MEM + r*128 + hlf*1152}')
    a('s_waitcnt lgkmcnt(0)')
    a('s_barrier')
    a('s_add_u32 s40, s40, 36864')
    a('s_addc_u32 s41, s41, 0')

    a.label('rec_compute')
    a('v_and_b32 v3, 15, v2')
    a('v_lshrrev_b32 v4, 4, v2')
    a('v_lshlrev_b32 v5, 13, v3')
    a('v_lshl_add_u32 v5, v4, 4, v5')
    for kt in range(2):
        for c in range(4):
            r = KX + (kt*4 + c)*4
            a(f'global_load_dwordx4 v[{r}:{r+3}], v5, s[42:43] offset:{c*64}' if kt == 0 else
              (f'v_add_u32 v6, {16*8192}, v5\n' if c == 0 else '') + f'global_load_dwordx4 v[{r}:{r+3}], v6, s[42:43] offset:{c*64}')
    a('v_lshl_add_u32 v6, v1, 5, v3')
    a('v_lshlrev_b32 v6, 12, v6')
    a('v_lshl_add_u32 v6, v4, 3, v6')
    for et in range(2):
        r = VX + et*4
        if et == 1:
            a(f'v_add_u32 v6, {16*4096}, v6')
        a(f'global_load_dwordx2 v[{r}:{r+1}], v6, s[44:45]')
        a(f'global_load_dwordx2 v[{r+2}:{r+3}], v6, s[44:45] offset:32')
    a('v_and_b32 v5, 7, v2')
    a('s_mov_b32 s18, 1152')
    a('v_mul_lo_u32 v5, v5, s18')
    a('v_lshl_add_u32 v5, v4, 4, v5')
    for i in range(24):
        a(f'v_mov_b32 v{ACCQ+i}, 0')
    a(f'ds_read_b128 v[{MF}:{MF+3}], v5 offset:{LDS_MEM}')
    for c in range(18):
        cur = MF + (c & 1)*4
        if c < 17:
            nx = MF + ((c+1) & 1)*4
            a(f'ds_read_b128 v[{nx}:{nx+3}], v5 offset:{LDS_MEM + (c+1)*64}')
            a('s_waitcnt lgkmcnt(1)')
        else:
            a('s_waitcnt lgkmcnt(0)')
        for X in range(3):
            for t in range(2):
                d = ACCQ + (X*2+t)*4
                a(f'v_mfma_f32_16x16x32_bf16 v[{d}:{d+3}], {wreg(X,t,c)[0]}, v[{cur}:{cur+3}], v[{d}:{d+3}]')
    a('s_nop 7')
    a('s_nop 1')
    a('v_cmp_gt_u32 vcc, 8, v3')
    a('s_and_saveexec_b64 s[24:25], vcc')
    a('v_lshlrev_b32 v5, 8, v3')
    a('v_lshl_add_u32 v5, v1, 6, v5')
    a('v_lshl_add_u32 v5, v4, 3, v5')
    for X in range(2):
        for t in range(2):
            d = ACCQ + (X*2+t)*4
            a(f'v_cvt_pk_bf16_f32 v{d}, v{d}, v{d+1}')
            a(f'v_cvt_pk_bf16_f32 v{d+1}, v{d+2}, v{d+3}')
            a(f'ds_write_b64 v5, v[{d}:{d+1}] offset:{(LDS_Q if X == 0 else LDS_K) + t*32}')
            if X == 1:
                a(f'global_store_dwordx2 v5, v[{d}:{d+1}], s[46:47] offset:{t*32}')
    a('v_lshlrev_b32 v6, 1, v3')
    a('v_lshl_add_u32 v6, v1, 9, v6')
    a('v_lshl_add_u32 v6, v4, 6, v6')
    for t in range(2):
        d = ACCQ + (4+t)*4
        a(f'v_cvt_pk_bf16_f32 v{d}, v{d}, v{d+1}')
        a(f'v_cvt_pk_bf16_f32 v{d+1}, v{d+2}, v{d+3}')
        for i in range(4):
            rr = d + i//2
            op = 'ds_write_b16' if i % 2 == 0 else 'ds_write_b16_d16_hi'
            a(f'{op} v6, v{rr} offset:{LDS_VT + (t*16+i)*16}')
            gop = 'global_store_short' if i % 2 == 0 else 'global_store_short_d16_hi'
            a(f'{gop} v6, v{rr}, s[48:49] offset:{(t*16+i)*16}')
    a('s_mov_b64 exec, s[24:25]')
    a('s_waitcnt lgkmcnt(0)')
    a('s_barrier')
    a('v_and_b32 v5, 7, v2')
    a('v_lshlrev_b32 v5, 8, v5')
    a('v_lshl_add_u32 v5, v4, 4, v5')
    for i in range(12):
        a(f'v_mov_b32 v{8+i}, 0')
    for c in range(4):
        a(f'ds_read_b128 v[{20+8*(c&1)}:{23+8*(c&1)}], v5 offset:{LDS_Q + c*64}')
        a(f'ds_read_b128 v[{24+8*(c&1)}:{27+8*(c&1)}], v5 offset:{LDS_K + c*64}')
        a('s_waitcnt vmcnt(0) lgkmcnt(0)')
        qf = f'v[{20+8*(c&1)}:{23+8*(c&1)}]'
        kf = f'v[{24+8*(c&1)}:{27+8*(c&1)}]'
        a(f'v_mfma_f32_16x16x32_bf16 v[8:11], {kf}, {qf}, v[8:11]')
        for kt in range(2):
            r = KX + (kt*4 + c)*4
            a(f'v_mfma_f32_16x16x32_bf16 v[{12+4*kt}:{15+4*kt}], v[{r}:{r+3}], {qf}, v[{12+4*kt}:{15+4*kt}]')
    a('s_nop 7')
    a('s_nop 1')
    a('v_cmp_gt_u32 vcc, 2, v4')
    a('v_mov_b32 v7, 0xce6e6b28')
    for i in range(12):
        bf16r(a, 8+i, 8+i)
        a(f'v_mul_f32 v{8+i}, 0x3db504f3, v{8+i}')
        bf16r(a, 8+i, 8+i)
        if i < 4:
            a(f'v_cndmask_b32 v{8+i}, v7, v{8+i}, vcc')
    a('v_max_f32 v5, v8, v9')
    for i in range(2, 12):
        a(f'v_max_f32 v5, v5, v{8+i}')
    a('v_xor_b32 v6, 32, v2')
    a('v_lshlrev_b32 v6, 2, v6')
    a('ds_swizzle_b32 v7, v5 offset:0x401F')
    a('s_waitcnt lgkmcnt(0)')
    a('v_max_f32 v5, v5, v7')
    a('ds_bpermute_b32 v7, v6, v5')
    a('s_waitcnt lgkmcnt(0)')
    a('v_max_f32 v5, v5, v7')
    a('v_mov_b32 v20, 0')
    for i in range(12):
        a(f'v_sub_f32 v{8+i}, v{8+i}, v5')
        a(f'v_mul_f32 v{8+i}, 0x3fb8aa3b, v{8+i}')
        a(f'v_exp_f32 v{8+i}, v{8+i}')
        a('s_nop 0')
        a(f'v_add_f32 v20, v20, v{8+i}')
    a('ds_swizzle_b32 v7, v20 offset:0x401F')
    a('s_waitcnt lgkmcnt(0)')
    a('v_add_f32 v20, v20, v7')
    a('ds_bpermute_b32 v7, v6, v20')
    a('s_waitcnt lgkmcnt(0)')
    a('v_add_f32 v20, v20, v7')
    a('v_rcp_f32 v20, v20')
    a('s_nop 0')
    for i in range(12):
        a(f'v_mul_f32 v{8+i}, v{8+i}, v20')
    for p in range(3):
        a(f'v_cvt_pk_bf16_f32 v{20+2*p}, v{8+4*p}, v{9+4*p}')
        a(f'v_cvt_pk_bf16_f32 v{21+2*p}, v{10+4*p}, v{11+4*p}')
    a('v_mov_b32 v26, 0'); a('v_mov_b32 v27, 0')
    a('v_lshl_add_u32 v5, v1, 5, v3')
    a('v_lshlrev_b32 v5, 4, v5')
    a('v_lshl_add_u32 v5, v4, 3, v5')
    for et in range(2):
        a(f'ds_read_b64 v[28:29], v5 offset:{LDS_VT + et*256}')
        a(f'v_mov_b32 v30, v{VX+4*et}'); a(f'v_mov_b32 v31, v{VX+4*et+1}')
        a(f'v_mov_b32 v32, v{VX+4*et+2}'); a(f'v_mov_b32 v33, v{VX+4*et+3}')
        a('v_mov_b32 v34, 0'); a('v_mov_b32 v35, 0')
        for i in range(4):
            a(f'v_mov_b32 v{8+4*et+i}, 0')
        a('s_waitcnt lgkmcnt(0)')
        a('s_nop 1')
        a(f'v_mfma_f32_16x16x32_bf16 v[{8+4*et}:{11+4*et}], v[28:31], v[20:23], v[{8+4*et}:{11+4*et}]')
        a(f'v_mfma_f32_16x16x32_bf16 v[{8+4*et}:{11+4*et}], v[32:35], v[24:27], v[{8+4*et}:{11+4*et}]')
        a('s_nop 7')
    a('s_nop 1')
    a('v_cmp_gt_u32 vcc, 8, v3')
    a('s_and_saveexec_b64 s[24:25], vcc')
    a('v_lshlrev_b32 v5, 8, v3')
    a('v_lshl_add_u32 v5, v1, 6, v5')
    a('v_lshl_add_u32 v5, v4, 3, v5')
    for et in range(2):
        d = 8 + 4*et
        a(f'v_cvt_pk_bf16_f32 v{d}, v{d}, v{d+1}')
        a(f'v_cvt_pk_bf16_f32 v{d+1}, v{d+2}, v{d+3}')
        a(f'ds_write_b64 v5, v[{d}:{d+1}] offset:{LDS_MEM + et*32}')
    a('s_mov_b64 exec, s[24:25]')
    a('s_waitcnt lgkmcnt(0)')
    a('s_barrier')
    a('s_add_u32 s20, s20, 1')
    a('s_cmp_ge_u32 s20, 64')
    a('s_cbranch_scc1 rec_end')
    a(f's_add_u32 s42, s42, {32*8192}'); a('s_addc_u32 s43, s43, 0')
    a('s_add_u32 s44, s44, 64'); a('s_addc_u32 s45, s45, 0')
    a(f's_add_u32 s46, s46, {32*2048}'); a('s_addc_u32 s47, s47, 0')
    a(f's_add_u32 s48, s48, {32*2048}'); a('s_addc_u32 s49, s49, 0')
    a('v_and_b32 v5, 7, v2')
    a('v_lshlrev_b32 v5, 8, v5')
    a('v_lshl_add_u32 v5, v4, 4, v5')
    for c in range(4):
        a(f'ds_read_b128 v[{8+4*c}:{11+4*c}], v5 offset:{LDS_MEM + c*64}')
    a('v_lshrrev_b32 v6, 2, v3')
    a('v_lshl_add_u32 v6, v4, 3, v6')
    a('s_mov_b32 s18, 1152')
    a('v_mul_lo_u32 v6, v6, s18')
    a('v_and_b32 v7, 3, v2')
    a('v_lshl_add_u32 v6, v7, 3, v6')
    a('s_mov_b32 s18, 288')
    a('v_mul_lo_u32 v7, v1, s18')
    a('v_add_u32 v6, v6, v7')
    a('v_lshl_add_u32 v7, v4, 3, v3')
    a('v_lshlrev_b32 v7, 3, v7')
    a('s_mov_b32 s18, 9216')
    a('v_mul_lo_u32 v36, v1, s18')
    a('v_add_u32 v7, v7, v36')
    for c in range(4):
        a(f'v_add_u32 v{46+c}, {LDS_W + 32*c*1152}, v6')
    a('v_cmp_gt_u32 vcc, 8, v3')
    a('s_waitcnt lgkmcnt(0)')
    for jj in range(9):
        for c in range(4):
            f = 24 + 4*c
            for j in range(2):
                a(f'ds_read_b64_tr_b16 v[{f+2*j}:{f+2*j+1}], v{46+c} offset:{4*j*1152 + jj*32}')
        for i in range(4):
            a(f'v_mov_b32 v{40+i}, 0')
        a('s_waitcnt lgkmcnt(0)')
        a('s_nop 0')
        for c in range(4):
            a(f'v_mfma_f32_16x16x32_bf16 v[40:43], v[{24+4*c}:{27+4*c}], v[{8+4*c}:{11+4*c}], v[40:43]')
        a('s_nop 7')
        a('s_nop 1')
        a('s_and_saveexec_b64 s[24:25], vcc')
        for i in range(4):
            a(f'v_cvt_f64_f32 v[44:45], v{40+i}')
            a('v_add_f64 v[44:45], v[44:45], s[32:33]')
            a(f'global_atomic_add_f64 v7, v[44:45], s[40:41] offset:{i*256} sc1')
            a('s_nop 1')
        a('s_mov_b64 exec, s[24:25]')
        a('v_add_u32 v7, 1024, v7')
    a('s_branch rec_loop')
    a.label('rec_end')
    a('s_endpgm')
    return kernel_desc(name, 512, accum=256)
```

```python
S, D, H, DH, F = 2048, 576, 32, 128, 4608
NSEG, SEG, M = 64, 32, 8
HD = H * DH

def al(x, a=4096):
    return (x + a - 1) // a * a

off = 0
MOD = off; off = al(off + 6 * D * 4)
ACC = off; off = al(off + NSEG * M * D * 8)
H1 = off; off = al(off + S * D * 2)
Q = off; off = al(off + S * HD * 2)
K = off; off = al(off + S * HD * 2)
V = off; off = al(off + S * HD * 2)
KMEM = off; off = al(off + NSEG * H * M * DH * 2)
VMEM = off; off = al(off + NSEG * H * M * DH * 2)
O = off; off = al(off + S * HD * 2)
X1 = off; off = al(off + S * D * 2)
H2 = off; off = al(off + S * D * 2)
HID = off; off = al(off + S * F * 2)
END = off
assert END <= 268435456
A_X, A_MEM0, A_WQ, A_WK, A_WV, A_WO, A_SEG, B_X, B_WG, B_WU, B_WD, C_, WMOD, OUT, DBG, WS = range(16)
if __name__ == '__main__':
    for k in ['MOD','ACC','H1','Q','K','V','KMEM','VMEM','O','X1','H2','HID','END']:
        print(k, globals()[k])
```

```python
import sys
from asmlib import *
import layout as L
from k_misc import gen_k0, gen_ln
from k_gemm import gen_gemm

NAME = 'adaLN_cond__memory_aug_recurrent_mem_tr__glu_gated_reglu__prompt'

def main(out_path, upto=99):
    a = Asm()
    descs = []
    launches = []
    def add(gen, grid, lds=0, block=256):
        launches.append((grid, block, lds))
        descs.append(gen())
    names = []
    names.append('k0_kernel');   add(lambda: gen_k0(a), 90, lds=8192)
    names.append('ln1_kernel');  add(lambda: gen_ln(a, 'ln1_kernel', L.A_X, 0, 0, 1, L.H1), 512)
    names.append('qkv_kernel');  add(lambda: gen_gemm(a, 'qkv_kernel', 16, 96, 576, 1152, 8192, (L.WS, L.H1), ('qkv',), 'store', ldo=8192), 16*96, lds=65536)
    try:
        from k_rec import gen_rec
        from k_attn import gen_attn
        names.append('rec_kernel');  add(lambda: gen_rec(a), 32, lds=163840)
        names.append('attn_kernel'); add(lambda: gen_attn(a), 512, lds=65536)
        names.append('oproj_kernel'); add(lambda: gen_gemm(a, 'oproj_kernel', 16, 5, 4096, 8192, 1152, (L.WS, L.O), ('single', L.A_WO), 'res1'), 80, lds=65536)
        names.append('ln2_kernel');  add(lambda: gen_ln(a, 'ln2_kernel', L.WS, L.X1, 3, 4, L.H2), 512)
        names.append('ffn1_kernel'); add(lambda: gen_gemm(a, 'ffn1_kernel', 16, 72, 576, 1152, 9216, (L.WS, L.H2), ('dual', L.B_WG, L.B_WU), 'glu'), 16*72, lds=65536)
        names.append('ffn2_kernel'); add(lambda: gen_gemm(a, 'ffn2_kernel', 16, 5, 4608, 9216, 1152, (L.WS, L.HID), ('single', L.B_WD), 'res2'), 80, lds=65536)
    except ImportError:
        pass
    hdr = ['; generated by gen/gen.py']
    for n, (g, b, lds) in list(zip(names, launches))[:upto]:
        hdr.append(f'; @launch kernel={n} grid=({g},1,1) block=({b},1,1) lds={lds}')
    txt = '\n'.join(hdr) + '\n.amdgcn_target "amdgcn-amd-amdhsa--gfx950"\n.text\n' + a.text()
    txt += '.section .rodata,"a"\n.p2align 6\n' + '.p2align 6\n'.join(descs)
    open(out_path, 'w').write(txt)

if __name__ == '__main__':
    main(sys.argv[1] if len(sys.argv) > 1 else f'cdna_kernels/{NAME}.s',
         int(sys.argv[2]) if len(sys.argv) > 2 else 99)
```

```python
from asmlib import *
import layout as L

LDS_MEM = 0
LDS_W = 16384
LDS_Q = LDS_MEM + 9216
LDS_K = LDS_Q + 2048
LDS_VT = LDS_K + 2048

def wreg(X, t, c):
    idx = ((X * 2 + t) * 18 + c) * 4
    if idx < 256:
        return f'a[{idx}:{idx+3}]', f'a{idx}', idx, 'a'
    idx = idx - 256 + 80
    return f'v[{idx}:{idx+3}]', f'v{idx}', idx, 'v'

ACCQ = 8
MF = 32
KX = 40
VX = 72

PROF = False
def stamp(a, i):
    if not PROF: return
    a('s_memtime s[50:51]')
    a('s_waitcnt lgkmcnt(0)')
    a(f's_cmp_eq_u32 s20, 10')
    a(f's_cbranch_scc0 st_{i}')
    a('v_mov_b32 v79, s50')
    a('v_mov_b32 v78, 0')
    a(f'global_store_dword v78, v79, s[52:53] offset:{4*i}')
    a.label(f'st_{i}')

def gen_rec(a):
    name = 'rec_kernel'
    kernel_header(a, name)
    a('s_cmp_ge_u32 s2, 32')
    a('s_cbranch_scc1 rec_end')
    load_ptr(a, 4, L.WS)
    load_ptr(a, 6, L.A_WQ); load_ptr(a, 8, L.A_WK); load_ptr(a, 10, L.A_WV)
    load_ptr(a, 12, L.A_WO); load_ptr(a, 14, L.A_MEM0)
    load_ptr(a, 52, L.DBG)
    a('v_lshrrev_b32 v1, 6, v0')
    a('v_and_b32 v2, 63, v0')
    a('s_nop 0')
    a('v_readfirstlane_b32 s16, v1')
    a('s_waitcnt lgkmcnt(0)')
    a('s_lshl_b32 s17, s16, 10')
    a('s_mov_b32 s30, 0'); a('s_mov_b32 s31, 0x41400000')
    a('s_mov_b32 s32, 0'); a('s_mov_b32 s33, 0x40f00000')
    a('s_mov_b32 s34, 0'); a('s_mov_b32 s35, 0x40e00000')
    a('s_mov_b32 s36, 0'); a('s_mov_b32 s37, 0xc1400000')
    a('v_lshrrev_b32 v3, 4, v2')
    a('v_and_b32 v4, 15, v2')
    a('v_lshlrev_b32 v5, 13, v3')
    a('v_lshl_add_u32 v5, v4, 4, v5')
    a('v_lshl_add_u32 v5, v1, 15, v5')
    a('v_lshrrev_b32 v6, 2, v4')
    a('v_lshl_add_u32 v6, v3, 3, v6')
    a('v_lshlrev_b32 v6, 8, v6')
    a('v_and_b32 v7, 3, v2')
    a('v_lshl_add_u32 v6, v7, 3, v6')
    a('v_lshl_add_u32 v6, v1, 6, v6')
    for i in range(3):
        a(f'v_add_u32 v{36+i}, {LDS_W + i*49152}, v6')
    for X, sp in enumerate([6, 8, 10]):
        a(f's_lshl_b32 s18, s2, 8')
        a(f's_add_u32 s{sp}, s{sp}, s18')
        a(f's_addc_u32 s{sp+1}, s{sp+1}, 0')
        for n in range(36):
            a(f's_add_u32 m0, s17, {LDS_W + n*4096}')
            a('s_nop 0')
            a(f'global_load_lds_dwordx4 v5, s[{sp}:{sp+1}]')
            a(f's_add_u32 s{sp}, s{sp}, {16*8192}')
            a(f's_addc_u32 s{sp+1}, s{sp+1}, 0')
        a('s_waitcnt vmcnt(0)')
        a('s_barrier')
        for t in range(2):
            for c in range(18):
                _, _, idx, kind = wreg(X, t, c)
                for j in range(2):
                    off = (32*c+4*j)*256 + t*32
                    a(f'ds_read_b64_tr_b16 {kind}[{idx+2*j}:{idx+2*j+1}], v{36 + off//49152} offset:{off % 49152}')
        a('s_waitcnt lgkmcnt(0)')
        a('s_barrier')
    a(f's_mul_i32 s18, s2, {128*1152}')
    a('s_add_u32 s12, s12, s18')
    a('s_addc_u32 s13, s13, 0')
    a('v_lshlrev_b32 v5, 4, v2')
    a('v_lshl_add_u32 v5, v1, 10, v5')
    for n in range(36):
        a(f's_add_u32 m0, s17, {LDS_W + n*4096}')
        a('s_nop 0')
        a('global_load_lds_dwordx4 v5, s[12:13]')
        a('s_add_u32 s12, s12, 4096')
        a('s_addc_u32 s13, s13, 0')
    add64(a, 40, 4, L.ACC)
    a('s_lshl_b32 s18, s2, 8')
    a(f's_add_u32 s18, s18, {L.K}')
    a('s_add_u32 s42, s4, s18'); a('s_addc_u32 s43, s5, 0')
    a(f's_mul_i32 s18, s2, {128*4096}')
    a(f's_add_u32 s18, s18, {L.V}')
    a('s_add_u32 s44, s4, s18'); a('s_addc_u32 s45, s5, 0')
    a('s_lshl_b32 s18, s2, 11')
    a(f's_add_u32 s18, s18, {L.KMEM}')
    a('s_add_u32 s46, s4, s18'); a('s_addc_u32 s47, s5, 0')
    a('s_lshl_b32 s18, s2, 11')
    a(f's_add_u32 s18, s18, {L.VMEM}')
    a('s_add_u32 s48, s4, s18'); a('s_addc_u32 s49, s5, 0')
    a('s_mov_b32 s20, 0')
    a('v_lshlrev_b32 v3, 4, v0')
    for r in range(3):
        if r == 2:
            a('v_cmp_gt_u32 vcc, 64, v0')
            a('s_and_saveexec_b64 s[24:25], vcc')
        a(f'global_load_dwordx4 v[8:11], v3, s[14:15] offset:{r*4096}' if r < 1 else f'v_add_u32 v4, {r*4096}, v3')
        if r >= 1:
            a(f'global_load_dwordx4 v[8:11], v4, s[14:15]')
        a('s_waitcnt vmcnt(0)')
        a(f'ds_write_b128 v3, v[8:11] offset:{LDS_MEM + r*4096}')
    a('s_mov_b64 exec, s[24:25]')
    a('s_waitcnt vmcnt(0) lgkmcnt(0)')
    a('s_barrier')
    a('s_branch rec_compute')

    a.label('rec_loop')
    a('v_lshlrev_b32 v3, 4, v0')
    a('s_mov_b32 s56, s40'); a('s_mov_b32 s57, s41')
    a('s_mov_b32 s58, 0')
    for r in range(36):
        a(f'v_mov_b32 v{44+r}, 0')
    a.label('rec_rep')
    a('s_mov_b32 s21, 0')
    a.label('rec_poll')
    for r in range(9):
        a(f'global_load_dwordx4 v[{8+4*r}:{11+4*r}], v3, s[56:57] offset:{r*4096} sc1' if r < 1 else
          f'v_add_u32 v4, {r*4096}, v3')
        if r >= 1:
            a(f'global_load_dwordx4 v[{8+4*r}:{11+4*r}], v4, s[56:57] sc1')
    a('s_waitcnt vmcnt(0)')
    a('s_mov_b64 s[26:27], -1')
    for r in range(9):
        for hlf in range(2):
            b = 8 + 4*r + 2*hlf
            a(f'v_add_f64 v[{b}:{b+1}], v[{b}:{b+1}], s[36:37]')
            a(f'v_cmp_lt_f64 vcc, |v[{b}:{b+1}]|, s[34:35]')
            a('s_and_b64 s[26:27], s[26:27], vcc')
    a('s_cmp_eq_u64 s[26:27], exec')
    a('s_cbranch_scc1 rec_got')
    a('s_add_u32 s21, s21, 1')
    a('s_cmp_lt_u32 s21, 5000')
    a('s_cbranch_scc0 rec_got')
    a('s_sleep 1')
    a('s_branch rec_poll')
    a.label('rec_got')
    for r in range(18):
        a(f'v_add_f64 v[{44+2*r}:{45+2*r}], v[{44+2*r}:{45+2*r}], v[{8+2*r}:{9+2*r}]')
    a('s_add_u32 s56, s56, 36864'); a('s_addc_u32 s57, s57, 0')
    a('s_add_u32 s58, s58, 1')
    a('s_cmp_lt_u32 s58, 1')
    a('s_cbranch_scc1 rec_rep')
    a('s_sub_u32 s20, s20, 1')
    stamp(a, 4)
    a('s_add_u32 s20, s20, 1')
    a('v_and_b32 v4, 3, v0')
    a('s_mov_b32 s18, 2304')
    a('v_mul_lo_u32 v4, v4, s18')
    a('v_bfe_u32 v5, v0, 2, 2')
    a('v_lshl_add_u32 v4, v5, 3, v4')
    a('v_lshrrev_b32 v5, 4, v0')
    a('v_lshrrev_b32 v6, 2, v5')
    a('v_and_b32 v5, 3, v5')
    a('v_lshl_add_u32 v4, v6, 5, v4')
    a('v_lshl_add_u32 v4, v5, 1, v4')
    for r in range(9):
        for hlf in range(2):
            b = 44 + 4*r + 2*hlf
            a(f'v_cvt_f32_f64 v{b}, v[{b}:{b+1}]')
            a(f'v_cvt_pk_bf16_f32 v{b}, v{b}, v{b}')
            a(f'ds_write_b16 v4, v{b} offset:{LDS_MEM + r*128 + hlf*1152}')
    a('s_waitcnt lgkmcnt(0)')
    a('s_barrier')
    a('s_add_u32 s40, s40, 36864')
    a('s_addc_u32 s41, s41, 0')

    a.label('rec_compute')
    stamp(a, 0)
    a('v_and_b32 v3, 15, v2')
    a('v_lshrrev_b32 v4, 4, v2')
    a('v_lshlrev_b32 v5, 13, v3')
    a('v_lshl_add_u32 v5, v4, 4, v5')
    for kt in range(2):
        for c in range(4):
            r = KX + (kt*4 + c)*4
            a(f'global_load_dwordx4 v[{r}:{r+3}], v5, s[42:43] offset:{c*64}' if kt == 0 else
              (f'v_add_u32 v6, {16*8192}, v5\n' if c == 0 else '') + f'global_load_dwordx4 v[{r}:{r+3}], v6, s[42:43] offset:{c*64}')
    a('v_lshl_add_u32 v6, v1, 5, v3')
    a('v_lshlrev_b32 v6, 12, v6')
    a('v_lshl_add_u32 v6, v4, 3, v6')
    for et in range(2):
        r = VX + et*4
        if et == 1:
            a(f'v_add_u32 v6, {16*4096}, v6')
        a(f'global_load_dwordx2 v[{r}:{r+1}], v6, s[44:45]')
        a(f'global_load_dwordx2 v[{r+2}:{r+3}], v6, s[44:45] offset:32')
    a('v_and_b32 v5, 7, v2')
    a('s_mov_b32 s18, 1152')
    a('v_mul_lo_u32 v5, v5, s18')
    a('v_lshl_add_u32 v5, v4, 4, v5')
    for i in range(24):
        a(f'v_mov_b32 v{ACCQ+i}, 0')
    a(f'ds_read_b128 v[{MF}:{MF+3}], v5 offset:{LDS_MEM}')
    for c in range(18):
        cur = MF + (c & 1)*4
        if c < 17:
            nx = MF + ((c+1) & 1)*4
            a(f'ds_read_b128 v[{nx}:{nx+3}], v5 offset:{LDS_MEM + (c+1)*64}')
            a('s_waitcnt lgkmcnt(1)')
        else:
            a('s_waitcnt lgkmcnt(0)')
        for X in range(3):
            for t in range(2):
                d = ACCQ + (X*2+t)*4
                a(f'v_mfma_f32_16x16x32_bf16 v[{d}:{d+3}], {wreg(X,t,c)[0]}, v[{cur}:{cur+3}], v[{d}:{d+3}]')
    a('s_nop 7')
    a('s_nop 1')
    stamp(a, 1)
    a('v_cmp_gt_u32 vcc, 8, v3')
    a('s_and_saveexec_b64 s[24:25], vcc')
    a('v_lshlrev_b32 v5, 8, v3')
    a('v_lshl_add_u32 v5, v1, 6, v5')
    a('v_lshl_add_u32 v5, v4, 3, v5')
    for X in range(2):
        for t in range(2):
            d = ACCQ + (X*2+t)*4
            a(f'v_cvt_pk_bf16_f32 v{d}, v{d}, v{d+1}')
            a(f'v_cvt_pk_bf16_f32 v{d+1}, v{d+2}, v{d+3}')
            a(f'ds_write_b64 v5, v[{d}:{d+1}] offset:{(LDS_Q if X == 0 else LDS_K) + t*32}')
            if X == 1:
                a(f'global_store_dwordx2 v5, v[{d}:{d+1}], s[46:47] offset:{t*32}')
    a('v_lshlrev_b32 v6, 1, v3')
    a('v_lshl_add_u32 v6, v1, 9, v6')
    a('v_lshl_add_u32 v6, v4, 6, v6')
    for t in range(2):
        d = ACCQ + (4+t)*4
        a(f'v_cvt_pk_bf16_f32 v{d}, v{d}, v{d+1}')
        a(f'v_cvt_pk_bf16_f32 v{d+1}, v{d+2}, v{d+3}')
        for i in range(4):
            rr = d + i//2
            op = 'ds_write_b16' if i % 2 == 0 else 'ds_write_b16_d16_hi'
            a(f'{op} v6, v{rr} offset:{LDS_VT + (t*16+i)*16}')
            gop = 'global_store_short' if i % 2 == 0 else 'global_store_short_d16_hi'
            a(f'{gop} v6, v{rr}, s[48:49] offset:{(t*16+i)*16}')
    a('s_mov_b64 exec, s[24:25]')
    a('s_waitcnt lgkmcnt(0)')
    a('s_barrier')
    a('v_and_b32 v5, 7, v2')
    a('v_lshlrev_b32 v5, 8, v5')
    a('v_lshl_add_u32 v5, v4, 4, v5')
    for i in range(12):
        a(f'v_mov_b32 v{8+i}, 0')
    for c in range(4):
        a(f'ds_read_b128 v[{20+8*(c&1)}:{23+8*(c&1)}], v5 offset:{LDS_Q + c*64}')
        a(f'ds_read_b128 v[{24+8*(c&1)}:{27+8*(c&1)}], v5 offset:{LDS_K + c*64}')
        a('s_waitcnt vmcnt(0) lgkmcnt(0)')
        qf = f'v[{20+8*(c&1)}:{23+8*(c&1)}]'
        kf = f'v[{24+8*(c&1)}:{27+8*(c&1)}]'
        a(f'v_mfma_f32_16x16x32_bf16 v[8:11], {kf}, {qf}, v[8:11]')
        for kt in range(2):
            r = KX + (kt*4 + c)*4
            a(f'v_mfma_f32_16x16x32_bf16 v[{12+4*kt}:{15+4*kt}], v[{r}:{r+3}], {qf}, v[{12+4*kt}:{15+4*kt}]')
    a('s_nop 7')
    a('s_nop 1')
    a('v_cmp_gt_u32 vcc, 2, v4')
    a('v_mov_b32 v7, 0xce6e6b28')
    for i in range(12):
        bf16r(a, 8+i, 8+i)
        a(f'v_mul_f32 v{8+i}, 0x3db504f3, v{8+i}')
        bf16r(a, 8+i, 8+i)
        if i < 4:
            a(f'v_cndmask_b32 v{8+i}, v7, v{8+i}, vcc')
    a('v_max_f32 v5, v8, v9')
    for i in range(2, 12):
        a(f'v_max_f32 v5, v5, v{8+i}')
    a('v_xor_b32 v6, 32, v2')
    a('v_lshlrev_b32 v6, 2, v6')
    a('ds_swizzle_b32 v7, v5 offset:0x401F')
    a('s_waitcnt lgkmcnt(0)')
    a('v_max_f32 v5, v5, v7')
    a('ds_bpermute_b32 v7, v6, v5')
    a('s_waitcnt lgkmcnt(0)')
    a('v_max_f32 v5, v5, v7')
    a('v_mov_b32 v20, 0')
    for i in range(12):
        a(f'v_sub_f32 v{8+i}, v{8+i}, v5')
        a(f'v_mul_f32 v{8+i}, 0x3fb8aa3b, v{8+i}')
        a(f'v_exp_f32 v{8+i}, v{8+i}')
        a('s_nop 0')
        a(f'v_add_f32 v20, v20, v{8+i}')
    a('ds_swizzle_b32 v7, v20 offset:0x401F')
    a('s_waitcnt lgkmcnt(0)')
    a('v_add_f32 v20, v20, v7')
    a('ds_bpermute_b32 v7, v6, v20')
    a('s_waitcnt lgkmcnt(0)')
    a('v_add_f32 v20, v20, v7')
    a('v_rcp_f32 v20, v20')
    a('s_nop 0')
    for i in range(12):
        a(f'v_mul_f32 v{8+i}, v{8+i}, v20')
    for p in range(3):
        a(f'v_cvt_pk_bf16_f32 v{20+2*p}, v{8+4*p}, v{9+4*p}')
        a(f'v_cvt_pk_bf16_f32 v{21+2*p}, v{10+4*p}, v{11+4*p}')
    a('v_mov_b32 v26, 0'); a('v_mov_b32 v27, 0')
    a('v_lshl_add_u32 v5, v1, 5, v3')
    a('v_lshlrev_b32 v5, 4, v5')
    a('v_lshl_add_u32 v5, v4, 3, v5')
    for et in range(2):
        a(f'ds_read_b64 v[28:29], v5 offset:{LDS_VT + et*256}')
        a(f'v_mov_b32 v30, v{VX+4*et}'); a(f'v_mov_b32 v31, v{VX+4*et+1}')
        a(f'v_mov_b32 v32, v{VX+4*et+2}'); a(f'v_mov_b32 v33, v{VX+4*et+3}')
        a('v_mov_b32 v34, 0'); a('v_mov_b32 v35, 0')
        for i in range(4):
            a(f'v_mov_b32 v{8+4*et+i}, 0')
        a('s_waitcnt lgkmcnt(0)')
        a('s_nop 1')
        a(f'v_mfma_f32_16x16x32_bf16 v[{8+4*et}:{11+4*et}], v[28:31], v[20:23], v[{8+4*et}:{11+4*et}]')
        a(f'v_mfma_f32_16x16x32_bf16 v[{8+4*et}:{11+4*et}], v[32:35], v[24:27], v[{8+4*et}:{11+4*et}]')
        a('s_nop 7')
    a('s_nop 1')
    a('v_cmp_gt_u32 vcc, 8, v3')
    a('s_and_saveexec_b64 s[24:25], vcc')
    a('v_lshlrev_b32 v5, 8, v3')
    a('v_lshl_add_u32 v5, v1, 6, v5')
    a('v_lshl_add_u32 v5, v4, 3, v5')
    for et in range(2):
        d = 8 + 4*et
        a(f'v_cvt_pk_bf16_f32 v{d}, v{d}, v{d+1}')
        a(f'v_cvt_pk_bf16_f32 v{d+1}, v{d+2}, v{d+3}')
        a(f'ds_write_b64 v5, v[{d}:{d+1}] offset:{LDS_MEM + et*32}')
    a('s_mov_b64 exec, s[24:25]')
    a('s_waitcnt lgkmcnt(0)')
    a('s_barrier')
    stamp(a, 2)
    a('s_add_u32 s20, s20, 1')
    a('s_cmp_ge_u32 s20, 64')
    a('s_cbranch_scc1 rec_end')
    a(f's_add_u32 s42, s42, {32*8192}'); a('s_addc_u32 s43, s43, 0')
    a('s_add_u32 s44, s44, 64'); a('s_addc_u32 s45, s45, 0')
    a(f's_add_u32 s46, s46, {32*2048}'); a('s_addc_u32 s47, s47, 0')
    a(f's_add_u32 s48, s48, {32*2048}'); a('s_addc_u32 s49, s49, 0')
    a('v_and_b32 v5, 7, v2')
    a('v_lshlrev_b32 v5, 8, v5')
    a('v_lshl_add_u32 v5, v4, 4, v5')
    for c in range(4):
        a(f'ds_read_b128 v[{8+4*c}:{11+4*c}], v5 offset:{LDS_MEM + c*64}')
    a('v_lshrrev_b32 v6, 2, v3')
    a('v_lshl_add_u32 v6, v4, 3, v6')
    a('s_mov_b32 s18, 1152')
    a('v_mul_lo_u32 v6, v6, s18')
    a('v_and_b32 v7, 3, v2')
    a('v_lshl_add_u32 v6, v7, 3, v6')
    a('s_mov_b32 s18, 288')
    a('v_mul_lo_u32 v7, v1, s18')
    a('v_add_u32 v6, v6, v7')
    a('v_lshl_add_u32 v7, v4, 3, v3')
    a('v_lshlrev_b32 v7, 3, v7')
    a('s_mov_b32 s18, 9216')
    a('v_mul_lo_u32 v36, v1, s18')
    a('v_add_u32 v7, v7, v36')
    for c in range(4):
        a(f'v_add_u32 v{46+c}, {LDS_W + 32*c*1152}, v6')
    a('v_cmp_gt_u32 vcc, 8, v3')
    a('s_waitcnt lgkmcnt(0)')
    def wo_reads(jj):
        fb = 24 if jj % 2 == 0 else 52
        for c in range(4):
            for j2 in range(2):
                a(f'ds_read_b64_tr_b16 v[{fb+4*c+2*j2}:{fb+4*c+2*j2+1}], v{46+c} offset:{4*j2*1152 + jj*32}')
    def wo_out(jj):
        d = 40 if jj % 2 == 0 else 68
        for i in range(2):
            t = 72 + 4*i
            a(f'v_mov_b32 v{t+2}, v{d+2*i}')
            a('s_nop 1')
            a(f'v_mov_b32_dpp v{t+2}, v{d+2*i+1} row_shr:8 row_mask:0xf bank_mask:0xf')
            a(f'v_cvt_f64_f32 v[{t}:{t+1}], v{t+2}')
            a(f'v_add_f64 v[{t}:{t+1}], v[{t}:{t+1}], s[32:33]')
            a(f'global_atomic_add_f64 v7, v[{t}:{t+1}], s[54:55] offset:{i*512} sc1')
        a('v_add_u32 v7, 1024, v7')
    a('v_and_b32 v36, 7, v2')
    a('v_lshl_add_u32 v7, v4, 3, v36')
    a('v_lshlrev_b32 v7, 3, v7')
    a('v_lshrrev_b32 v36, 3, v3')
    a('v_lshl_add_u32 v7, v36, 8, v7')
    a('s_mov_b32 s18, 9216')
    a('v_mul_lo_u32 v36, v1, s18')
    a('v_add_u32 v7, v7, v36')
    a('s_mov_b32 s18, 0')
    a('s_mul_i32 s18, s18, 36864')
    a('s_add_u32 s54, s40, s18')
    a('s_addc_u32 s55, s41, 0')
    wo_reads(0)
    for jj in range(9):
        fb = 24 if jj % 2 == 0 else 52
        d = 40 if jj % 2 == 0 else 68
        if jj < 8:
            wo_reads(jj+1)
        for i in range(4):
            a(f'v_mov_b32 v{d+i}, 0')
        a('s_waitcnt lgkmcnt(8)' if jj < 8 else 's_waitcnt lgkmcnt(0)')
        a('s_nop 0')
        for c in range(4):
            a(f'v_mfma_f32_16x16x32_bf16 v[{d}:{d+3}], v[{fb+4*c}:{fb+4*c+3}], v[{8+4*c}:{11+4*c}], v[{d}:{d+3}]')
        if jj > 0:
            wo_out(jj-1)
    a('s_nop 7')
    a('s_nop 1')
    wo_out(8)
    a('s_sub_u32 s20, s20, 1')
    stamp(a, 3)
    a('s_add_u32 s20, s20, 1')
    a('s_branch rec_loop')
    a.label('rec_end')
    a('s_endpgm')
    return kernel_desc(name, 512, accum=256)
```
